```python
import torch

def _softmax(x, axis=-1):
    return torch.softmax(x, dim=axis)
def _gelu(x):
    return torch.nn.functional.gelu(x, approximate="tanh")
def _silu(x):
    return torch.nn.functional.silu(x)
def _sigmoid(x):
    return torch.sigmoid(x)
def _layernorm(x, axis=-1, eps=1e-5):
    m = x.mean(dim=axis, keepdim=True)
    v = x.var(dim=axis, keepdim=True, unbiased=False)
    return (x - m) / torch.sqrt(v + eps)
def _scatter_add(tgt, idx, src, axis=0):
    return tgt.clone().index_add_(axis, idx, src)
def _segment_sum(src, seg, n):
    out = torch.zeros((n,) + src.shape[1:], dtype=src.dtype)
    return out.index_add_(0, seg, src)
def _pad(x, pw):
    flat = tuple(v for pair in reversed(pw) for v in pair)
    return torch.nn.functional.pad(x, flat)

kernel_name = 'sequential_preLN__ssm_conv_h3__glu_gated_glu__prompt'

def setup_inputs():

    _w = (lambda a: (lambda t: t.to(torch.bfloat16) if t.is_floating_point() else t)(torch.as_tensor(a)))
    def _A_setup():
        B, S, D = 1, 2048, 512
        ks = 4
        return {
            "q": _w((lambda *s: torch.randn(*s, dtype=torch.bfloat16) * 0.05)(B, S, D)),
            "k": _w((lambda *s: torch.randn(*s, dtype=torch.bfloat16) * 0.4)(B, S, D)),
            "v": _w((lambda *s: torch.randn(*s, dtype=torch.bfloat16) * 0.4)(B, S, D)),
            "shift_k": _w((lambda *s: torch.randn(*s, dtype=torch.bfloat16) * 0.4)(D, ks) * 0.5),
            "ssm_k": _w((lambda *s: torch.randn(*s, dtype=torch.bfloat16) * 0.4)(D, S) * (1.0 / S ** 0.5)),
            "ssm_D": _w((lambda *s: torch.randn(*s, dtype=torch.bfloat16) * 0.4)(D)),
        }
    _A_in = _A_setup()

    def _B_setup():
        B, S, D, F = 1, 2048, 512, 1376
        return {
            "x": _w((lambda *s: torch.randn(*s, dtype=torch.bfloat16) * 0.05)(B, S, D)),
            "w_gate": _w((lambda *s: torch.randn(*s, dtype=torch.bfloat16) * 0.05)(D, F)),
            "w_up": _w((lambda *s: torch.randn(*s, dtype=torch.bfloat16) * 0.05)(D, F)),
            "w_down": _w((lambda *s: torch.randn(*s, dtype=torch.bfloat16) * 0.05)(F, D)),
        }
    _B_in = _B_setup()

    return {
        "A_q": _A_in["q"],
        "A_k": _A_in["k"],
        "A_v": _A_in["v"],
        "A_shift_k": _A_in["shift_k"],
        "A_ssm_k": _A_in["ssm_k"],
        "A_ssm_D": _A_in["ssm_D"],
        "B_x": _B_in["x"],
        "B_w_gate": _B_in["w_gate"],
        "B_w_up": _B_in["w_up"],
        "B_w_down": _B_in["w_down"],
    }

def reference(A_q, A_k, A_v, A_shift_k, A_ssm_k, A_ssm_D, B_x, B_w_gate, B_w_up, B_w_down):
    def _A_ref(q, k, v, shift_k, ssm_k, ssm_D):
        B, S, D = q.shape
        ks = shift_k.shape[-1]
        k_pad = _pad(k, ((0, 0), (ks - 1, 0), (0, 0)))
        k_shift = torch.zeros_like(k)
        for t in range(ks):
            k_shift = k_shift + k_pad[:, t:t + S, :] * shift_k[:, ks - 1 - t][None, None, :]
        kv = k_shift * v
        L = 2 * S
        kv_pad = _pad(kv, ((0, 0), (0, S), (0, 0)))
        kf_pad = _pad(ssm_k, ((0, 0), (0, S)))
        kv_f = (lambda x, axes=(-2,-1): torch.fft.rfft2(x.float(), dim=axes))(kv_pad[:, None, :, :], axes=(1, 2))
        kf_f = (lambda x, axes=(-2,-1): torch.fft.rfft2(x.float(), dim=axes))(kf_pad[:, None, :], axes=(1, 2))
        kf_f = (lambda x, *d: x.permute(*d))(kf_f, 1, 2, 0)
        y_f = kv_f * kf_f[None, :, :, :]
        y = (lambda x, s, axes=(-2,-1): torch.fft.irfft2(x, s=s, dim=axes).to(torch.bfloat16))(y_f, (1, L), axes=(1, 2))[:, 0, :S, :]
        y = y + kv * ssm_D[None, None, :]
        return q * y

    def _B_ref(x, w_gate, w_up, w_down):
        g = torch.einsum("bsd,df->bsf", x, w_gate)
        u = torch.einsum("bsd,df->bsf", x, w_up)
        h = _sigmoid(g) * u
        return torch.einsum("bsf,fd->bsd", h, w_down)

    x = A_q
    h = x + _A_ref(_layernorm(x, axis=-1), A_k, A_v, A_shift_k, A_ssm_k, A_ssm_D)
    h2 = h + _B_ref(_layernorm(h, axis=-1), B_w_gate, B_w_up, B_w_down)
    return h2
```

```python
import re

TRANS = ("v_exp_f32", "v_log_f32", "v_rcp_f32", "v_rsq_f32", "v_sqrt_f32", "v_sin_f32", "v_cos_f32")

def regs_of(op):
    op = op.strip()
    op = op.lstrip("-")
    if op.startswith("abs(") or op.startswith("|"):
        op = op.replace("abs(", "").replace(")", "").replace("|", "")
    m = re.fullmatch(r"([vas])(\d+)", op)
    if m:
        return [(m.group(1), int(m.group(2)))]
    m = re.fullmatch(r"([vas])\[(\d+):(\d+)\]", op)
    if m:
        return [(m.group(1), i) for i in range(int(m.group(2)), int(m.group(3)) + 1)]
    if op == "vcc":
        return [("s", "vcc")]
    if op == "exec":
        return [("s", "exec")]
    if op == "m0":
        return [("s", "m0")]
    return []

class Ins:
    def __init__(self, text):
        self.text = text
        t = text.split(";")[0].strip()
        self.label = None
        self.op = None
        if t.endswith(":"):
            self.label = t[:-1]
            return
        if not t or t.startswith("."):
            return
        parts = t.split(None, 1)
        self.op = parts[0]
        rest = parts[1] if len(parts) > 1 else ""
        toks = [x.strip() for x in rest.split(",")] if rest else []
        self.mods = []
        ops = []
        for i, tk in enumerate(toks):
            sp = tk.split()
            if not sp:
                continue
            ops.append(sp[0])
            self.mods += sp[1:]
        self.ops = ops
        self.classify()

    def classify(self):
        op, ops = self.op, self.ops
        R = lambda i: regs_of(ops[i]) if i < len(ops) else []
        self.kind = "other"
        self.w, self.r = [], []
        self.srcC = []
        self.srcAB = []
        self.passes = 0
        self.vm = self.lgkm = False
        self.ldst = []
        if op.startswith("v_mfma"):
            self.kind = "mfma"
            self.w = R(0); self.srcAB = R(1) + R(2); self.srcC = R(3); self.r = self.srcAB + self.srcC
            self.passes = 8 if "32x32x16" in op else 4
            assert "32x32x16_bf16" in op or "16x16x32_bf16" in op, op
        elif op.startswith("buffer_") or op.startswith("global_"):
            self.kind = "vmem"; self.vm = True
            lds = "lds" in self.mods or "_lds_" in op
            if op.startswith("buffer_wbl2") or op.startswith("buffer_inv"):
                pass
            elif "load" in op and not lds:
                self.ldst = R(0); self.r = sum((R(i) for i in range(1, len(ops))), [])
            elif lds:
                self.r = sum((R(i) for i in range(len(ops))), []) + [("s", "m0")]
                self.isdma = True
            else:
                self.r = sum((R(i) for i in range(len(ops))), [])
                if "atomic" in op and "sc0" in self.mods:
                    self.ldst = R(0) if op.startswith("buffer_") else R(0)
                if "store" in op and ("x3" in op or "x4" in op):
                    self.wide = R(0) if op.startswith("buffer_") else R(1)
        elif op.startswith("ds_"):
            self.kind = "ds"; self.lgkm = True
            if "read" in op or "permute" in op or "swizzle" in op:
                self.ldst = R(0); self.r = sum((R(i) for i in range(1, len(ops))), [])
            else:
                self.r = sum((R(i) for i in range(len(ops))), [])
        elif op.startswith("s_load") or op.startswith("s_buffer_load") or op in ("s_memtime", "s_memrealtime"):
            self.kind = "smem"; self.lgkm = True
            self.ldst = R(0); self.r = sum((R(i) for i in range(1, len(ops))), [])
        elif op.startswith("v_"):
            self.kind = "valu"
            if op.startswith("v_cmp"):
                self.w = R(0); self.r = R(1) + R(2)
            elif op.startswith("v_permlane") and "swap" in op:
                self.w = R(0) + R(1); self.r = R(0) + R(1)
            elif op.startswith("v_readfirstlane") or op.startswith("v_readlane"):
                self.w = R(0); self.r = R(1) + R(2)
            elif op in ("v_add_co_u32", "v_sub_co_u32"):
                self.w = R(0) + R(1); self.r = R(2) + R(3)
            elif op in ("v_addc_co_u32",):
                self.w = R(0) + R(1); self.r = R(2) + R(3) + R(4)
            else:
                self.w = R(0); self.r = sum((R(i) for i in range(1, len(ops))), [])
                if op.startswith("v_fmac") or op.startswith("v_dot2c") or op.startswith("v_writelane") or any(m.startswith("row_") or m.startswith("quad_perm") or m.startswith("wave_") for m in self.mods):
                    self.r += R(0)
            self.dpp = any(m.startswith("row_") or m.startswith("quad_perm") or m.startswith("wave_") for m in self.mods)
            self.trans = op.split("_e")[0] in TRANS
        elif op.startswith("s_"):
            self.kind = "salu"
            if op.startswith("s_cmp") or op.startswith("s_cbranch") or op in ("s_branch", "s_barrier", "s_waitcnt", "s_nop", "s_endpgm", "s_sleep", "s_setprio", "s_bitcmp1_b32", "s_bitcmp0_b32"):
                self.r = sum((R(i) for i in range(len(ops))), [])
            else:
                self.w = R(0); self.r = sum((R(i) for i in range(1, len(ops))), [])
                if "saveexec" in op:
                    self.w += [("s", "exec")]
                if op in ("s_addk_i32", "s_mulk_i32"):
                    self.r += R(0)
        else:
            raise ValueError("unknown op " + op)

class Asm:
    def __init__(self):
        self.lines = []
    def __call__(self, text):
        for l in text.split("\n"):
            if l.strip():
                self.lines.append(l.rstrip())
    def text(self):
        return "\n".join(("" if (l.strip().endswith(":") or l.startswith(".") or l.startswith(";")) else "  ") + l.strip() for l in self.lines) + "\n"

def states(ins):
    if ins.op == "s_nop":
        return int(ins.ops[0], 0) + 1
    return 1

def check_path(path, errs, name):
    n = len(path)
    for i, c in enumerate(path):
        dist = 0
        j = i - 1
        cr, cw = set(c.r), set(c.w) | set(c.ldst)
        while j >= 0 and dist < 22:
            p = path[j]
            need = 0
            pw = set(p.w)
            if p.kind == "valu":
                vw = {x for x in pw if x[0] in "va"}
                sw = {x for x in pw if x[0] == "s"}
                if c.kind == "mfma" and vw & cr: need = max(need, 2)
                if c.kind == "valu":
                    if getattr(p, "trans", False) and not c.trans and vw & cr: need = max(need, 1)
                    if (c.op.startswith("v_permlane") or c.dpp) and vw & cr: need = max(need, 2)
                    if (c.op.startswith("v_readfirstlane") or c.op.startswith("v_readlane")) and vw & cr: need = max(need, 1)
                    if sw & cr: need = max(need, 4 if c.op.startswith("v_readlane") or c.op.startswith("v_writelane") else 2)
                if c.kind == "vmem" and sw & cr: need = max(need, 5)
            if p.kind == "mfma":
                big = p.passes == 8
                if c.kind == "mfma":
                    if pw & set(c.srcAB): need = max(need, 12 if big else 8)
                    if pw & set(c.srcC):
                        if not (p.w == c.srcC and p.passes == c.passes): need = max(need, 10 if big else 6)
                    elif pw & set(c.w): need = max(need, 12 if big else 8)
                elif c.kind in ("valu", "vmem", "ds"):
                    if pw & (cr | cw): need = max(need, 12 if big else 8)
                if c.kind == "valu" and set(p.srcC) & set(c.w): need = max(need, 7 if big else 3)
            if p.kind == "salu" and ("s", "m0") in pw and getattr(c, "isdma", False): need = max(need, 1)
            if hasattr(p, "wide") and set(p.wide) & cw: need = max(need, 2 if c.kind == "valu" else 1)
            if need > dist:
                errs.append(f"[{name}] hazard: need {need} have {dist}: '{p.text.strip()}' -> '{c.text.strip()}'")
            dist += states(p)
            j -= 1
    vmq, lgq = [], []
    for c in path:
        if c.op == "s_waitcnt":
            t = c.text.split(";")[0]
            m = re.search(r"vmcnt\((\d+)\)", t)
            if m:
                k = int(m.group(1)); vmq = vmq[len(vmq) - k:] if k < len(vmq) else vmq
                if k == 0: vmq = []
            m = re.search(r"lgkmcnt\((\d+)\)", t)
            if m:
                k = int(m.group(1))
                if k == 0: lgq = []
                elif any(x.kind == "smem" for x in lgq):
                    errs.append(f"[{name}] counted lgkmcnt with SMEM outstanding: {c.text.strip()}")
                elif k < len(lgq): lgq = lgq[len(lgq) - k:]
            continue
        touched = set(c.r) | set(c.w) | set(c.ldst)
        for q in (vmq, lgq):
            for p in q:
                ov = touched & set(p.ldst)
                if ov:
                    errs.append(f"[{name}] use before wait: '{p.text.strip()}' -> '{c.text.strip()}'")
        if c.vm:
            vmq.append(c)
            if len(vmq) > 63: errs.append(f"[{name}] >63 vm outstanding at {c.text.strip()}")
        if c.lgkm:
            lgq.append(c)

def check(text, entry, maxpaths=64):
    ins = [Ins(l) for l in text.split("\n")]
    ins = [x for x in ins if x.label or x.op]
    lab = {x.label: i for i, x in enumerate(ins) if x.label}
    errs = []
    npaths = [0]
    def walk(pc, path, taken):
        while True:
            x = ins[pc]
            if x.label:
                pc += 1; continue
            path = path + [x] if False else path
            path.append(x)
            if x.op == "s_endpgm":
                npaths[0] += 1
                check_path(path, errs, f"{entry}#{npaths[0]}")
                return
            if x.op == "s_branch":
                pc = lab[x.ops[0]]; continue
            if x.op.startswith("s_cbranch"):
                tgt = lab[x.ops[0]]
                cm = x.text.split(";", 1)[1] if ";" in x.text else ""
                if "@never" in cm:
                    pc += 1; continue
                if tgt <= pc:
                    cnt = taken.get(pc, 0)
                    lim = 1
                    m = re.search(r"@loop(\d+)", cm)
                    if m: lim = int(m.group(1))
                    if cnt < lim:
                        taken = dict(taken); taken[pc] = cnt + 1
                        pc = tgt
                    else:
                        taken = dict(taken); taken[pc] = 0
                        pc += 1
                    continue
                if npaths[0] < maxpaths:
                    walk(tgt, list(path), taken)
                pc += 1
                continue
            pc += 1
    walk(lab[entry], [], {})
    seen = set(); out = []
    for e in errs:
        k = e.split("] ", 1)[1]
        if k not in seen:
            seen.add(k); out.append(e)
    return out, npaths[0]

def interleave(main, side, per=None, start=0):
    out = []
    si = 0
    for idx, (t, slots) in enumerate(main):
        out.append(t)
        if idx < start: continue
        b = slots
        while si < len(side) and b > 0:
            s = side[si]
            cost = 2 if s.split()[0] in TRANS else 1
            if s.startswith("s_nop"): cost = int(s.split()[1]) + 1
            out.append(s); si += 1; b -= cost
    out += side[si:]
    return out
```

```python
from gen import *
import struct
def fbits(x): return hex(struct.unpack("<I", struct.pack("<f", x))[0])

UPOFF = 11264 + 16
WBLK = 22784
STAT = 131072
ACC2 = 16
CS = 52
BB2 = 64
ET = 80
vHB = 2
vHA = 3
vST = 4
vO2 = 5; vO1 = 6
W1V = 112
vWX = 123; vWZ = 124

def w1_voffsets(A, T):
    A(f"v_and_b32 v{T}, 63, v0\ns_movk_i32 s{sT}, 5958\ns_movk_i32 s{sT+1}, 2752")
    for i in range(11):
        A(f"""
v_add_u32 v{T+1}, {64*i}, v{T}
v_mul_lo_u32 v{T+2}, v{T+1}, s{sT}
v_lshrrev_b32 v{T+2}, 16, v{T+2}
v_mul_u32_u24 v{T+3}, 11, v{T+2}
v_sub_u32 v{T+1}, v{T+1}, v{T+3}
v_mul_lo_u32 v{T+2}, v{T+2}, s{sT+1}
v_lshl_add_u32 v{W1V+i}, v{T+1}, 4, v{T+2}
""")

def w1_dma(A, batch, ldsbase):
    A(f"""
s_mul_i32 s{sT}, s{sC}, 172
s_add_u32 s{sT+1}, s{sW}, {4*batch}
s_mul_i32 s{sT+1}, s{sT+1}, {64*2752}
s_add_u32 s{sT}, s{sT}, s{sT+1}
s_mul_i32 s{sT+1}, s{sW}, {WBLK}
s_add_u32 s{sT+1}, s{sT+1}, {ldsbase}
""")
    for arr in range(2):
        for i in range(11):
            A(f"s_add_u32 m0, s{sT+1}, {arr*UPOFF + i*1024}\ns_nop 0")
            A(f"buffer_load_dwordx4 v{W1V+i}, {srd(SWU if arr else SWG)}, s{sT} offen lds")

def w1_raddr(A, T):
    A(f"""
v_bfe_u32 v{T}, v0, 4, 2
v_lshlrev_b32 v{T}, 3, v{T}
v_bfe_u32 v{T+1}, v0, 2, 2
v_lshl_add_u32 v{T}, v{T+1}, 1, v{T}
v_mul_u32_u24 v{T}, 176, v{T}
s_mul_i32 s{sT}, s{sW}, 48
v_add_u32 v{T}, s{sT}, v{T}
v_and_b32 v{T+1}, 3, v0
v_lshl_add_u32 v{vWX}, v{T+1}, 3, v{T}
v_bfe_u32 v{T+1}, v0, 1, 1
v_lshl_add_u32 v{T}, v{T+1}, 3, v{T}
v_and_b32 v{T+1}, 1, v0
v_mul_u32_u24 v{T+1}, {UPOFF}, v{T+1}
v_add3_u32 v{vWZ}, v{T}, v{T+1}, 32
""")

def w1_reads(A, batch, ldsbase, T):
    for blk in range(4):
        if blk % 2 == 0:
            A(f"v_add_u32 v{T}, {ldsbase + blk*WBLK}, v{vWX}\nv_add_u32 v{T+1}, {ldsbase + blk*WBLK}, v{vWZ}")
        for sp in range(2):
            s = (4*batch + blk)*2 + sp
            o = (blk % 2)*WBLK + sp*32*176
            for tau in range(3):
                a = (s*3 + tau)*4
                va = T+1 if tau == 2 else T
                oo = o + (UPOFF if tau == 1 else 0)
                A(f"ds_read_b64_tr_b16 a[{a}:{a+1}], v{va} offset:{oo}")
                A(f"ds_read_b64_tr_b16 a[{a+2}:{a+3}], v{va} offset:{oo+176}")
        if blk % 2 == 1 and blk < 3: A("s_waitcnt lgkmcnt(0)")

def w1_finish(A, T):
    A(f"""
s_cmp_lg_u32 s{sW}, 3
s_cbranch_scc1 L_nopatch
v_mov_b32 v{T}, 0x3f803f80
s_mov_b32 exec_lo, 0x40004000
s_mov_b32 exec_hi, 0x40004000
""")
    for s in range(16):
        for i in range(4):
            A(f"v_accvgpr_write_b32 a{(s*3)*4+i}, v{T}")
    A("s_mov_b64 exec, -1\nL_nopatch:")
    for i in range(4): A(f"v_mov_b32 v{T+i}, 0x3f803f80")
    A("s_nop 1")
    for s in range(16):
        for tau in range(3):
            a = (s*3+tau)*4
            c = f"v[{CS+4*tau}:{CS+4*tau+3}]" if s else "0"
            A(f"v_mfma_f32_16x16x32_bf16 v[{CS+4*tau}:{CS+4*tau+3}], a[{a}:{a+3}], v[{T}:{T+3}], {c}")
    A(f"s_nop 7\nv_permlane16_swap_b32 v{CS+8}, v{CS+10}\nv_permlane16_swap_b32 v{CS+9}, v{CS+11}")

def h_dma(A, half, fl=""):
    A(f"""
s_lshl_b32 s{sT}, s{sRB}, 17
s_lshl_b32 s{sT+1}, s{sW}, 10
s_add_u32 s{sT}, s{sT}, s{sT+1}
s_add_u32 s{sT}, s{sT}, {HT + half*65536}
s_add_u32 s{sT+1}, s{sT+1}, {half*65536}
v_and_b32 v1, 63, v0
v_lshlrev_b32 v1, 4, v1
""")
    for i in range(16):
        A(f"s_add_u32 m0, s{sT+1}, {i*4096}")
        A(f"s_add_u32 s{sT+2}, s{sT}, {i*4096}")
        A(f"buffer_load_dwordx4 v1, {srd(SWS)}, s{sT+2} offen lds {fl}")

def p2_addrs(A, T):
    A(f"""
v_bfe_u32 v{T}, v0, 5, 1
v_lshlrev_b32 v{T}, 4, v{T}
v_bfe_u32 v{T+1}, v0, 2, 3
v_add_u32 v{T}, v{T}, v{T+1}
v_lshlrev_b32 v{T}, 7, v{T}
v_bfe_u32 v{T+1}, v0, 3, 2
v_lshl_add_u32 v{T}, v{T+1}, 5, v{T}
v_and_b32 v{T+1}, 3, v0
v_lshl_add_u32 v{vHB}, v{T+1}, 3, v{T}
v_and_b32 v{T}, 15, v0
v_lshlrev_b32 v{T}, 4, v{T}
v_add_u32 v{vST}, {STAT}, v{T}
v_bfe_u32 v{T+1}, v0, 4, 2
v_lshl_add_u32 v{vO1}, v{T+1}, 2, v{T}
v_bfe_u32 v{T+1}, v0, 5, 1
v_lshl_add_u32 v{vO2}, v{T+1}, 8, v{T}
v_bfe_u32 v{T+1}, v0, 4, 1
v_lshl_add_u32 v{vO2}, v{T+1}, 3, v{vO2}
s_mul_i32 s{sT+8}, s{sRB}, {8*HH_TT}
s_mul_i32 s{sT+9}, s{sC}, {11*256}
s_add_u32 s{sT+8}, s{sT+8}, s{sT+9}
s_mul_i32 s{sT+9}, s{sW}, {3*256}
s_add_u32 s{sT+8}, s{sT+8}, s{sT+9}
s_add_u32 s{sT+8}, s{sT+8}, {HH}
""")

def epi(tt, w3, stfl=""):
    acc = ACC2 + 12*(tt % 3)
    M, Aa, SD = ET, ET+1, ET+2
    L = []
    pairs = [(acc+i, acc+4+i, CS+i, CS+4+i) for i in range(4)]
    if not w3:
        L += [f"v_permlane16_swap_b32 v{acc+8}, v{acc+10}", f"v_permlane16_swap_b32 v{acc+9}, v{acc+11}"]
        pairs += [(acc+8, acc+10, CS+8, CS+10), (acc+9, acc+11, CS+9, CS+11)]
    L += ["@WAITSTAT"]
    E = ET + 4
    n = len(pairs)
    for i, (g, u, cg, cu) in enumerate(pairs): L.append(f"v_fma_f32 v{E+i}, -v{M}, v{cg}, v{g}")
    for i in range(n): L.append(f"v_mul_f32 v{E+i}, v{E+i}, v{Aa}")
    for i in range(n): L.append(f"v_exp_f32 v{E+i}, v{E+i}")
    for i, (g, u, cg, cu) in enumerate(pairs): L.append(f"v_fma_f32 v{E+8+i}, -v{M}, v{cu}, v{u}")
    for i in range(n): L.append(f"v_fma_f32 v{E+i}, v{E+i}, v{SD}, v{SD}")
    for i in range(n): L.append(f"v_rcp_f32 v{E+i}, v{E+i}")
    L.append(f"s_add_u32 s{sT+9}, s{sT+8}, {tt*HH_TT}")
    for i in range(n): L.append(f"v_mul_f32 v{E+i}, v{E+i}, v{E+8+i}")
    O = ET + 20
    for i in range(n//2): L.append(f"v_cvt_pk_bf16_f32 v{O+i}, v{E+2*i}, v{E+2*i+1}")
    if w3: L.append(f"v_cndmask_b32 v{O+1}, v{O+1}, 0, s[{sT+10}:{sT+11}]")
    L.append(f"buffer_store_dwordx2 v[{O}:{O+1}], v{vO2}, {srd(SWS)}, s{sT+9} offen {stfl}")
    if not w3: L.append(f"buffer_store_dword v{O+2}, v{vO1}, {srd(SWS)}, s{sT+9} offen offset:512 {stfl}")
    return L

def stats3(tt):
    acc = ACC2 + 12*(tt % 3)
    T = ET + 24
    L = []
    L += [f"v_cndmask_b32 v{T}, v{acc+8}, v{acc+9}, s[{sT+12}:{sT+13}]",
          f"v_cndmask_b32 v{T+1}, v{acc+10}, v{acc+11}, s[{sT+12}:{sT+13}]",
          f"v_cndmask_b32 v{T}, v{T}, v{T+1}, s[{sT+14}:{sT+15}]",
          f"ds_bpermute_b32 v{T+4}, v{ET+31}, v{acc+2}",
          "@WAITL0",
          f"v_mul_f32 v{T+4}, 0x3b000000, v{T+4}",
          f"v_mul_f32 v{T}, 0x3b000000, v{T}",
          f"v_fma_f32 v{T}, -v{T+4}, v{T+4}, v{T}",
          f"v_max_f32 v{T}, 0, v{T}",
          f"v_add_f32 v{T}, 0x3727c5ac, v{T}",
          f"v_rsq_f32 v{T+5}, v{T}",
          f"s_nop 0",
          f"v_mul_f32 v{T+6}, v{T}, v{T+5}",
          f"v_mul_f32 v{T+5}, {fbits(-LOG2E)}, v{T+5}",
          f"s_mov_b64 exec, s[{sT+16}:{sT+17}]",
          f"ds_write_b128 v{vST}, v[{T+4}:{T+7}] offset:{tt*256}",
          f"s_mov_b64 exec, -1"]
    return L

def p2_tile(tt, w3):
    acc = ACC2 + 12*(tt % 3)
    M = []
    for s in range(16):
        gs = tt*16 + s + 3
        if gs < 128:
            ptt, ps = divmod(gs, 16)
            if ps == 0: M.append((f"v_xor_b32 v{vHA}, {(ptt & 3)*32 + (ptt >> 2)*65536}, v{vHB}", 0))
            b = BB2 + 4*(gs % 4)
            rd = [f"ds_read_b64_tr_b16 v[{b}:{b+1}], v{vHA} offset:{ps*4096}", f"ds_read_b64_tr_b16 v[{b+2}:{b+3}], v{vHA} offset:{ps*4096+1024}"]
        else:
            rd = [None, None]
        b = BB2 + 4*((tt*16+s) % 4)
        M.append((f"@WAITB{'' if gs < 128 else 'T'+str(127-(tt*16+s))}", 0))
        for tau in range(3):
            a = (s*3+tau)*4
            d = f"v[{acc+4*tau}:{acc+4*tau+3}]"
            c = d if s else "0"
            av = f"v[{b}:{b+3}]" if (w3 and tau == 2) else f"a[{a}:{a+3}]"
            M.append((f"v_mfma_f32_16x16x32_bf16 {d}, {av}, v[{b}:{b+3}], {c}", 2 if tau == 2 else 1))
            if tau < 2 and rd[tau]: M.append((rd[tau], 0))
    return M

def resolve_waits(lines):
    out = []
    q = []
    n = len(lines)
    for idx, l in enumerate(lines):
        if l.startswith("@WAIT"):
            if l.startswith("@WAITB"):
                nxt = Ins(lines[idx+1]); need = set(nxt.srcAB)
            elif l == "@WAITSTAT":
                need = {("v", ET+i) for i in range(4)}
            elif l == "@WAITL0":
                need = {("v", ET+28)}
            k = None
            for i, d in enumerate(q):
                if d & need: k = i
            if k is not None:
                rem = len(q) - 1 - k
                out.append(f"s_waitcnt lgkmcnt({rem})")
                q = q[k+1:]
            continue
        x = Ins(l)
        if x.op == "s_waitcnt" and "lgkmcnt(0)" in l: q = []
        if x.op and x.kind == "ds":
            q.append(set(x.ldst))
            assert len(q) <= 15, "lgkm overflow"
        out.append(l)
    return out

def p2_main(A, w3, hwait, stfl=""):
    lines = []
    lines.append(f"v_mov_b32 v{vHA}, v{vHB}")
    for s in range(3):
        b = BB2 + 4*s
        lines += [f"ds_read_b64_tr_b16 v[{b}:{b+1}], v{vHA} offset:{s*4096}", f"ds_read_b64_tr_b16 v[{b+2}:{b+3}], v{vHA} offset:{s*4096+1024}"]
    for tt in range(8):
        side = []
        if w3 and tt >= 1: side += ["s_nop 0"]*2 + stats3(tt-1)
        if tt >= 2:
            side = [f"ds_read_b128 v[{ET}:{ET+3}], v{vST} offset:{(tt-2)*256}"] + side + epi(tt-2, w3, stfl)
        M = p2_tile(tt, w3)
        tl = interleave(M, side, start=2)
        lines += tl
        lines += ["s_waitcnt lgkmcnt(6)" if False else "@BAR"]
    out = []
    for l in lines:
        out.append(l)
    lines = out
    tail = []
    if w3: tail += ["s_nop 7"] + stats3(7)
    tail = [f"ds_read_b128 v[{ET}:{ET+3}], v{vST} offset:{6*256}"] + tail + epi(6, w3, stfl) + ["@BAR"]
    tail += [f"ds_read_b128 v[{ET}:{ET+3}], v{vST} offset:{7*256}"] + epi(7, w3, stfl)
    lines += tail
    res = []
    bi = 0
    for l in lines:
        if l == "@BAR":
            res.append("@WAITW")
            res += hwait(bi)
            res.append("s_barrier")
            bi += 1
        else: res.append(l)
    out = []
    q = []
    for idx, l in enumerate(res):
        if l == "@WAITW":
            k = None
            for i, d in enumerate(q):
                if d == "W": k = i
            if k is not None:
                out.append(f"s_waitcnt lgkmcnt({len(q)-1-k})"); q = q[k+1:]
            continue
        if l.startswith("@WAIT"):
            if l.startswith("@WAITB"): need = set(Ins(res[idx+1]).srcAB)
            elif l == "@WAITSTAT": need = {("v", ET+i) for i in range(4)}
            else: need = {("v", ET+28)}
            k = None
            for i, d in enumerate(q):
                if d != "W" and d & need: k = i
            if k is not None:
                out.append(f"s_waitcnt lgkmcnt({len(q)-1-k})"); q = q[k+1:]
            continue
        x = Ins(l)
        if x.op and x.kind == "ds":
            q.append(set(x.ldst) if x.ldst else "W")
            assert len(q) <= 15, "lgkm overflow"
        out.append(l)
    for l in out: A(l)

def p2_w3_consts(A, T):
    diag = 0
    for g in range(4):
        for n in range(4*g, 4*g+4): diag |= 1 << (16*g + n)
    A(f"""
s_mov_b32 s{sT+10}, 0
s_mov_b32 s{sT+11}, 0xffff0000
s_mov_b32 s{sT+12}, 0xaaaaaaaa
s_mov_b32 s{sT+13}, 0xaaaaaaaa
s_mov_b32 s{sT+14}, 0xcccccccc
s_mov_b32 s{sT+15}, 0xcccccccc
s_mov_b32 s{sT+16}, {hex(diag & 0xffffffff)}
s_mov_b32 s{sT+17}, {hex(diag >> 32)}
v_and_b32 v{ET+31}, 15, v0
v_add_u32 v{ET+31}, 48, v{ET+31}
v_lshlrev_b32 v{ET+31}, 2, v{ET+31}
""")

def k2(A):
    T = 8
    w1_voffsets(A, T)
    w1_dma(A, 0, 0)
    w1_raddr(A, T)
    A("s_waitcnt vmcnt(0)\ns_barrier")
    w1_reads(A, 0, 0, T)
    A("s_waitcnt lgkmcnt(0)\ns_barrier")
    w1_dma(A, 1, 0)
    A("s_waitcnt vmcnt(0)\ns_barrier")
    w1_reads(A, 1, 0, T)
    A("s_waitcnt lgkmcnt(0)\ns_barrier")
    h_dma(A, 0)
    h_dma(A, 1)
    w1_finish(A, T)
    p2_addrs(A, T)
    p2_w3_consts(A, T)
    A("s_waitcnt vmcnt(0)\ns_barrier")
    hwait = lambda i: []
    A(f"s_cmp_eq_u32 s{sW}, 3\ns_cbranch_scc1 L_p2w3")
    p2_main(A, False, hwait)
    A("s_branch L_p2done\nL_p2w3:")
    p2_main(A, True, hwait)
    A("L_p2done:")

def w2reg(s):
    if s < 16: return ("a", 192 + 4*s)
    return ("v", 144 + 4*(s-16))
ACC3 = 16
BB3 = 48
RES = 72
vW2 = 2; vW2R = 3; vB3 = 4

def w2_dma(A, batch, ldsbase):
    A(f"""
v_bfe_u32 v1, v0, 3, 3
v_and_b32 v{vW2}, 7, v0
v_bfe_u32 v{vW2R}, v0, 4, 1
v_lshlrev_b32 v{vW2R}, 2, v{vW2R}
v_xor_b32 v{vW2}, v{vW2}, v{vW2R}
v_lshlrev_b32 v{vW2}, 4, v{vW2}
v_lshl_add_u32 v{vW2}, v1, 10, v{vW2}
s_and_b32 s{sT}, s{sC}, 7
s_lshl_b32 s{sT}, s{sT}, 7
s_add_u32 s{sT+1}, s{sW}, {4*batch}
s_mul_i32 s{sT+1}, s{sT+1}, {86*1024}
s_add_u32 s{sT}, s{sT}, s{sT+1}
s_mul_i32 s{sT+1}, s{sW}, 11264
s_add_u32 s{sT+1}, s{sT+1}, {ldsbase}
""")
    for kh in range(2):
        for i in range(11):
            A(f"s_add_u32 m0, s{sT+1}, {kh*4*11264 + i*1024}")
            A(f"s_add_u32 s{sT+2}, s{sT}, {kh*8*86*1024 + i*8192}")
            A(f"buffer_load_dwordx4 v{vW2}, {srd(SWD)}, s{sT+2} offen lds")

def w2_reads(A, batch, ldsbase):
    A(f"""
v_bfe_u32 v1, v0, 5, 1
v_lshlrev_b32 v1, 3, v1
v_bfe_u32 v{vW2R}, v0, 2, 2
v_add_u32 v1, v1, v{vW2R}
v_lshlrev_b32 v1, 7, v1
v_bfe_u32 v{vW2R}, v0, 3, 1
s_and_b32 s{sT}, s{sW}, 1
v_xor_b32 v{vW2R}, s{sT}, v{vW2R}
v_lshl_add_u32 v1, v{vW2R}, 6, v1
v_bfe_u32 v{vW2R}, v0, 4, 1
v_lshl_add_u32 v1, v{vW2R}, 5, v1
v_and_b32 v{vW2R}, 3, v0
v_lshl_add_u32 v1, v{vW2R}, 3, v1
s_lshr_b32 s{sT}, s{sW}, 1
s_mul_i32 s{sT}, s{sT}, {4*11264}
s_add_u32 s{sT}, s{sT}, {ldsbase}
v_add_u32 v{vW2R}, s{sT}, v1
""")
    for sl in range(22):
        f, r = w2reg(22*batch + sl)
        A(f"ds_read_b64_tr_b16 {f}[{r}:{r+1}], v{vW2R} offset:{sl*2048}")
        A(f"ds_read_b64_tr_b16 {f}[{r+2}:{r+3}], v{vW2R} offset:{sl*2048+512}")

NSLOT = 19
def hh_dma(A, qgs, fl=""):
    for qg in qgs:
        for kh in range(2):
            A(f"s_add_u32 m0, s{sT+5}, {(qg % NSLOT)*8192 + kh*4096}")
            A(f"s_add_u32 s{sT+2}, s{sT+4}, {(kh*22 + qg)*1024}")
            A(f"buffer_load_dwordx4 v{vW2}, {srd(SWS)}, s{sT+2} offen lds {fl}")

def hh_setup(A):
    A(f"""
s_lshl_b32 s{sT+4}, s{sRB}, 3
s_lshr_b32 s{sT+5}, s{sC}, 3
s_lshl_b32 s{sT+5}, s{sT+5}, 2
s_add_u32 s{sT+4}, s{sT+4}, s{sT+5}
s_add_u32 s{sT+4}, s{sT+4}, s{sW}
s_mul_i32 s{sT+4}, s{sT+4}, {HH_TT}
s_add_u32 s{sT+4}, s{sT+4}, {HH}
s_lshl_b32 s{sT+5}, s{sW}, 10
v_and_b32 v{vW2}, 63, v0
v_lshlrev_b32 v{vW2}, 4, v{vW2}
v_and_b32 v1, 15, v0
v_lshlrev_b32 v1, 4, v1
v_bfe_u32 v{vB3}, v0, 4, 1
v_lshl_add_u32 v1, v{vB3}, 10, v1
v_bfe_u32 v{vB3}, v0, 5, 1
v_lshl_add_u32 v1, v{vB3}, 8, v1
s_lshr_b32 s{sT}, s{sW}, 1
s_lshl_b32 s{sT}, s{sT}, 12
v_add_u32 v{vB3}, s{sT}, v1
v_add_u32 v{vB3+1}, 65536, v{vB3}
v_add_u32 v{vB3+2}, 131072, v{vB3}
""")

def res_dma(A, base):
    A(f"""
s_lshl_b32 s{sT}, s{sRB}, 17
s_lshr_b32 s{sT+1}, s{sC}, 3
s_lshl_b32 s{sT+1}, s{sT+1}, 16
s_add_u32 s{sT}, s{sT}, s{sT+1}
s_and_b32 s{sT+1}, s{sC}, 7
s_lshl_b32 s{sT+1}, s{sT+1}, 13
s_add_u32 s{sT}, s{sT}, s{sT+1}
s_lshl_b32 s{sT+1}, s{sW}, 11
s_add_u32 s{sT}, s{sT}, s{sT+1}
s_add_u32 s{sT}, s{sT}, {HT}
v_and_b32 v1, 63, v0
v_lshlrev_b32 v1, 4, v1
s_add_u32 m0, s{sT+1}, {base}
s_nop 0
buffer_load_dwordx4 v1, {srd(SWS)}, s{sT} offen lds
buffer_load_dwordx4 v1, {srd(SWS)}, s{sT} offen offset:1024 lds
""")

def res_reads(A, sbase, T):
    A(f"""
v_bfe_u32 v{T}, v0, 2, 1
v_lshlrev_b32 v{T}, 3, v{T}
v_bfe_u32 v{T+1}, v0, 5, 1
v_lshl_add_u32 v{T}, v{T+1}, 1, v{T}
v_bfe_u32 v{T+2}, v0, 3, 1
v_add_u32 v{T}, v{T}, v{T+2}
v_lshlrev_b32 v{T}, 7, v{T}
v_bfe_u32 v{T+2}, v0, 4, 1
s_and_b32 s{sT}, s{sW}, 2
v_add_u32 v{T+2}, s{sT}, v{T+2}
v_xor_b32 v{T+2}, v{T+2}, v{T+1}
v_lshl_add_u32 v{T}, v{T+2}, 5, v{T}
v_and_b32 v{T+2}, 3, v0
v_lshl_add_u32 v{T}, v{T+2}, 3, v{T}
s_and_b32 s{sT}, s{sW}, 1
s_lshl_b32 s{sT}, s{sT}, 12
s_add_u32 s{sT}, s{sT}, s{sbase}
v_add_u32 v{T}, s{sT}, v{T}
v_xor_b32 v{T+1}, 64, v{T}
""")
    for i in range(4):
        A(f"ds_read_b64_tr_b16 v[{RES+2*i}:{RES+2*i+1}], v{T+(i&1)} offset:{(i&1)*512 + (i>>1)*2048}")

def p3_main(A, waits, fl=""):
    NB = 3
    lines = []
    def rd(s):
        qg = s >> 1
        off = (qg % NSLOT)*8192 + (s & 1)*512
        va = vB3 + off // 65536
        off %= 65536
        out = list(waits.get(qg, [])) if s % 2 == 0 else []
        for th in range(2):
            b = BB3 + 8*(s % NB) + 4*th
            out.append(f"ds_read_b128 v[{b}:{b+3}], v{va} offset:{off + th*2048}")
        return out
    for s in range(NB-1): lines += rd(s)
    for s in range(44):
        if s + NB - 1 < 44: lines += rd(s + NB - 1)
        f, r = w2reg(s)
        for th in range(2):
            b = BB3 + 8*(s % NB) + 4*th
            lines.append(f"s_waitcnt lgkmcnt({2*min(NB-1, 43-s) + 1 - th})")
            d = f"v[{ACC3+16*th}:{ACC3+16*th+15}]"
            lines.append(f"v_mfma_f32_32x32x16_bf16 {d}, {f}[{r}:{r+3}], v[{b}:{b+3}], {d if s else '0'}")
    for l in lines: A(l)

def p3_epilogue(A, RB):
    T = 80
    A(f"""
v_and_b32 v{T}, 63, v0
v_lshlrev_b32 v{T}, 4, v{T}
s_lshl_b32 s{sT}, s{sW}, 12
s_xor_b32 s{sT+1}, s{sT}, 8192
v_add_u32 v{T+1}, s{sT+1}, v{T}
v_add_u32 v{T}, s{sT}, v{T}
v_and_b32 v{T+2}, 31, v0
v_lshlrev_b32 v{T+2}, 10, v{T+2}
v_bfe_u32 v{T+3}, v0, 5, 1
v_lshl_add_u32 v{T+2}, v{T+3}, 4, v{T+2}
s_lshl_b32 s{sT+2}, s{sRB}, 17
s_lshr_b32 s{sT+3}, s{sC}, 3
s_lshl_b32 s{sT+3}, s{sT+3}, 16
s_add_u32 s{sT+2}, s{sT+2}, s{sT+3}
s_lshr_b32 s{sT+3}, s{sW}, 1
s_lshl_b32 s{sT+3}, s{sT+3}, 15
s_add_u32 s{sT+2}, s{sT+2}, s{sT+3}
s_and_b32 s{sT+3}, s{sC}, 7
s_lshl_b32 s{sT+3}, s{sT+3}, 7
s_add_u32 s{sT+2}, s{sT+2}, s{sT+3}
s_and_b32 s{sT+3}, s{sW}, 1
s_lshl_b32 s{sT+3}, s{sT+3}, 6
s_add_u32 s{sT+2}, s{sT+2}, s{sT+3}
s_barrier
s_cmp_ge_u32 s{sW}, 2
s_cbranch_scc1 L_p3hi
""")
    for hi in range(2):
        keep = ACC3 + 16*hi
        send = ACC3 + 16*(1-hi)
        for i in range(4):
            A(f"ds_write_b128 v{T}, v[{send+4*i}:{send+4*i+3}] offset:{RB + 1024*i}")
        A("s_waitcnt lgkmcnt(0)\ns_barrier")
        for i in range(4):
            A(f"ds_read_b128 v[{send+4*i}:{send+4*i+3}], v{T+1} offset:{RB + 1024*i}")
        for i in range(4):
            U = T + 4 + 4*i
            A(f"v_lshlrev_b32 v{U}, 16, v{RES+2*i}\nv_and_b32 v{U+1}, s{sMASK}, v{RES+2*i}\nv_lshlrev_b32 v{U+2}, 16, v{RES+2*i+1}\nv_and_b32 v{U+3}, s{sMASK}, v{RES+2*i+1}")
            for e in (0, 2):
                A(f"v_pk_add_f32 v[{keep+4*i+e}:{keep+4*i+e+1}], v[{keep+4*i+e}:{keep+4*i+e+1}], v[{U+e}:{U+e+1}]")
        O = T + 20
        for i in range(4):
            A(f"s_waitcnt lgkmcnt({3-i})")
            for e in (0, 2):
                A(f"v_pk_add_f32 v[{keep+4*i+e}:{keep+4*i+e+1}], v[{keep+4*i+e}:{keep+4*i+e+1}], v[{send+4*i+e}:{send+4*i+e+1}]")
            A(f"v_cvt_pk_bf16_f32 v{O+2*i}, v{keep+4*i}, v{keep+4*i+1}\nv_cvt_pk_bf16_f32 v{O+2*i+1}, v{keep+4*i+2}, v{keep+4*i+3}")
            if i % 2 == 1:
                b = O + 2*(i-1)
                A(f"s_nop 1\nv_permlane32_swap_b32 v{b}, v{b+2}\nv_permlane32_swap_b32 v{b+1}, v{b+3}")
                A(f"buffer_store_dwordx4 v[{b}:{b+3}], v{T+2}, {srd(SO)}, s{sT+2} offen offset:{16*(i-1)}")
        if hi == 0: A("s_branch L_p3done\nL_p3hi:")
    A("L_p3done:")

def k3(A):
    res_dma(A, 152*1024)
    w2_dma(A, 0, 0)
    A("s_waitcnt vmcnt(0)\ns_barrier")
    w2_reads(A, 0, 0)
    A(f"s_mov_b32 s{sT+6}, {152*1024}")
    res_reads(A, sT+6, 8)
    A("s_waitcnt lgkmcnt(0)\ns_barrier")
    w2_dma(A, 1, 0)
    A("s_waitcnt vmcnt(0)\ns_barrier")
    w2_reads(A, 1, 0)
    A("s_waitcnt lgkmcnt(0)\ns_barrier")
    hh_setup(A)
    hh_dma(A, range(19))
    waits = {}
    waits[0] = [f"s_waitcnt vmcnt({38-8})", "s_barrier"]
    waits[4] = [f"s_waitcnt vmcnt({38-16})", "s_barrier"]
    B = Asm(); hh_dma(B, range(19, 22))
    waits[8] = [f"s_waitcnt vmcnt({38-24})", "s_barrier"] + B.lines
    waits[12] = [f"s_waitcnt vmcnt({38-32+6})", "s_barrier"]
    waits[16] = [f"s_waitcnt vmcnt(6)", "s_barrier"]
    waits[19] = [f"s_waitcnt vmcnt(0)", "s_barrier"]
    p3_main(A, waits)
    p3_epilogue(A, 0)
```

```python
import sys
from asmlib import *

KX   = 0
ST1  = 0x400000
FLG  = 0x410000
HT   = 0x500000
HH   = 0x800000
HH_TT = 176 * 256
WS_USED = 0x1000000

SX, SK, SV, SSK, SKF, SWG, SWU, SWD, SO, SWS, SDBG = 8, 12, 16, 20, 24, 28, 32, 36, 40, 44, 48
sD = 52
sG, sR, sW, sB = 54, 55, 56, 57
sRB, sC = 58, 59
sT = 60
sPL, sPH, sMASK = 80, 81, 82
def srd(b): return f"s[{b}:{b+3}]"

MB2 = 2 << 20
WSZ = 512 * 1376 * 2

def prologue(A, name, end):
    A(f".text\n.globl {name}\n.p2align 8\n.type {name},@function\n{name}:")
    A(f"""
s_cmp_ge_u32 s2, 256
s_cbranch_scc1 {end} ; @never
s_load_dwordx16 s[64:79], s[0:1], 0
s_load_dwordx8 s[84:91], s[0:1], 64
s_load_dwordx2 s[92:93], s[0:1], 96
s_mov_b32 s{sB}, s2
s_and_b32 s{sG}, s2, 7
s_lshr_b32 s{sR}, s2, 3
v_lshrrev_b32 v1, 6, v0
s_lshr_b32 s{sRB}, s{sR}, 4
v_readfirstlane_b32 s{sW}, v1
s_lshl_b32 s{sT}, s{sG}, 1
s_add_u32 s{sRB}, s{sRB}, s{sT}
s_and_b32 s{sC}, s{sR}, 15
s_mov_b32 s{sPL}, 0x05040100
s_mov_b32 s{sPH}, 0x07060302
s_mov_b32 s{sMASK}, 0xffff0000
""")
    sizes = {SX: MB2, SK: MB2, SV: MB2, SSK: 4096, SKF: MB2, SWG: WSZ, SWU: WSZ, SWD: WSZ, SO: MB2, SWS: WS_USED, SDBG: 256}
    for b, sz in sizes.items():
        A(f"s_mov_b32 s{b+2}, {sz}\ns_mov_b32 s{b+3}, 0x20000")
    A("s_waitcnt lgkmcnt(0)")
    src = {SX: 64, SK: 66, SV: 68, SSK: 70, SKF: 72, sD: 74, SWG: 78, SWU: 84, SWD: 86, SO: 88, SDBG: 90, SWS: 92}
    for b, s in src.items():
        A(f"s_mov_b64 s[{b}:{b+1}], s[{s}:{s+1}]")

def descriptor(name, nv=512, acc=256):
    return f""".section .rodata,"a"
.p2align 6
.amdhsa_kernel {name}
  .amdhsa_next_free_vgpr {nv}
  .amdhsa_next_free_sgpr 102
  .amdhsa_accum_offset {acc}
  .amdhsa_group_segment_fixed_size 0
  .amdhsa_kernarg_size 104
  .amdhsa_user_sgpr_count 2
  .amdhsa_user_sgpr_kernarg_segment_ptr 1
  .amdhsa_system_sgpr_workgroup_id_x 1
  .amdhsa_float_denorm_mode_32 3
.end_amdhsa_kernel
"""

def p0(A):
    vB = 2; vH = 3
    K = 8
    V = 20
    X = 28
    SKr = 36
    XS = 40
    KU = 48
    S = 70
    VU = 78
    KV = 94
    O = 110
    vO = 6; vS = 7
    A(f"""
v_and_b32 v1, 7, v0
v_lshrrev_b32 v{vO}, 3, v0
s_lshl_b32 s{sT}, s{sR}, 16
s_lshl_b32 s{sT+1}, s{sG}, 7
s_add_u32 s{sT}, s{sT}, s{sT+1}
v_lshlrev_b32 v{vB}, 13, v1
v_lshl_add_u32 v{vB}, v{vO}, 2, v{vB}
v_add_u32 v{vB}, s{sT}, v{vB}
v_subrev_u32 v{vH}, 3072, v{vB}
v_subrev_u32 v{vH+1}, 2048, v{vB}
v_subrev_u32 v{vH+2}, 1024, v{vB}
s_movk_i32 s{sT+2}, 4096
""")
    for i in range(3):
        A(f"buffer_load_dword v{K+i}, v{vH+i}, {srd(SK)}, 0 offen")
    def rows(base, sr):
        for j in range(8):
            so = "0" if j < 4 else f"s{sT+2}"
            A(f"buffer_load_dword v{base+j}, v{vB}, {srd(sr)}, {so} offen offset:{(j%4)*1024}")
    rows(K+3, SK)
    rows(V, SV)
    A(f"""
s_lshl_b32 s{sT+3}, s{sG}, 9
v_lshlrev_b32 v{vS}, 4, v{vO}
buffer_load_dwordx4 v[{SKr}:{SKr+3}], v{vS}, {srd(SSK)}, s{sT+3} offen
""")
    rows(X, SX)
    A(f"""
s_lshl_b32 s{sT+4}, s{sB}, 13
s_lshl_b32 s{sT+5}, s{sW}, 11
s_add_u32 s{sT+4}, s{sT+4}, s{sT+5}
v_and_b32 v{vS}, 63, v0
v_lshlrev_b32 v{vS}, 4, v{vS}
buffer_load_dwordx4 v[{XS}:{XS+3}], v{vS}, {srd(SX)}, s{sT+4} offen
buffer_load_dwordx4 v[{XS+4}:{XS+7}], v{vS}, {srd(SX)}, s{sT+4} offen offset:1024
v_lshlrev_b32 v{vO}, 14, v{vO}
v_lshl_add_u32 v{vO}, v1, 4, v{vO}
s_lshl_b32 s{sT+5}, s{sG}, 19
s_lshl_b32 s{sT+6}, s{sR}, 7
s_add_u32 s{sT+5}, s{sT+5}, s{sT+6}
s_add_u32 s{sT+5}, s{sT+5}, {KX}
s_add_u32 s{sT+6}, s{sT+5}, 4096
s_add_u32 s{sT+7}, s{sT+5}, 8192
s_add_u32 s{sT+8}, s{sT+5}, 12288
""")
    return dict(K=K, V=V, X=X, SKr=SKr, XS=XS, KU=KU, S=S, VU=VU, KV=KV, O=O, vO=vO, vS=vS)

def p0_compute(A, R, after, st1flags=""):
    K, V, X, SKr, XS, KU, S, VU, KV, O, vO, vS = (R[k] for k in "K V X SKr XS KU S VU KV O vO vS".split())
    A(f"s_waitcnt vmcnt({10 + 9 + after})")
    for j in range(11):
        A(f"v_lshlrev_b32 v{KU+2*j}, 16, v{K+j}\nv_and_b32 v{KU+2*j+1}, s{sMASK}, v{K+j}")
    A(f"s_waitcnt vmcnt({10 + after})")
    for i in range(4):
        for c in range(2):
            src = SKr + 2*c + i//2
            if i % 2 == 0: A(f"v_lshlrev_b32 v{S+2*i+c}, 16, v{src}")
            else: A(f"v_and_b32 v{S+2*i+c}, s{sMASK}, v{src}")
    for j in range(8):
        A(f"v_lshlrev_b32 v{VU+2*j}, 16, v{V+j}\nv_and_b32 v{VU+2*j+1}, s{sMASK}, v{V+j}")
    pr = lambda b: f"v[{b}:{b+1}]"
    for i in (3, 2, 1, 0):
        for j in range(8):
            kk = KU + 2*(j + 3 - i)
            if i == 3: A(f"v_pk_mul_f32 {pr(KV+2*j)}, {pr(kk)}, {pr(S+6)}")
            else: A(f"v_pk_fma_f32 {pr(KV+2*j)}, {pr(kk)}, {pr(S+2*i)}, {pr(KV+2*j)}")
    for j in range(8):
        A(f"v_pk_mul_f32 {pr(KV+2*j)}, {pr(KV+2*j)}, {pr(VU+2*j)}")
    for c in range(2):
        for i in range(4):
            A(f"v_cvt_pk_bf16_f32 v{O+4*c+i}, v{KV+4*i+c}, v{KV+4*i+2+c}")
    A(f"buffer_store_dwordx4 v[{O}:{O+3}], v{vO}, {srd(SWS)}, s{sT+5} offen")
    A(f"buffer_store_dwordx4 v[{O+4}:{O+7}], v{vO}, {srd(SWS)}, s{sT+6} offen")
    A(f"s_waitcnt vmcnt({2 + 2 + after})")
    for c in range(2):
        for i in range(4):
            A(f"v_perm_b32 v{O+8+4*c+i}, v{X+2*i+1}, v{X+2*i}, s{sPH if c else sPL}")
    A(f"buffer_store_dwordx4 v[{O+8}:{O+11}], v{vO}, {srd(SWS)}, s{sT+7} offen")
    A(f"buffer_store_dwordx4 v[{O+12}:{O+15}], v{vO}, {srd(SWS)}, s{sT+8} offen")

def p0_stats(A, R, after, flags=""):
    XS, vS = R["XS"], R["vS"]
    T = R["KU"]
    A(f"s_waitcnt vmcnt({after})")
    A(f"v_mov_b32 v{T+4}, 0x3f803f80")
    for i in range(4): A(f"v_mov_b32 v{T+i}, 0")
    for i in range(4):
        for r in range(2):
            A(f"v_dot2_f32_bf16 v{T+2*r}, v{XS+4*r+i}, v{T+4}, v{T+2*r}")
            A(f"v_dot2_f32_bf16 v{T+2*r+1}, v{XS+4*r+i}, v{XS+4*r+i}, v{T+2*r+1}")
    A("s_nop 2")
    for m in ("row_shr:1 row_mask:0xf bank_mask:0xf bound_ctrl:0", "row_shr:2 row_mask:0xf bank_mask:0xf bound_ctrl:0", "row_shr:4 row_mask:0xf bank_mask:0xf bound_ctrl:0",
              "row_shr:8 row_mask:0xf bank_mask:0xf bound_ctrl:0", "row_bcast:15 row_mask:0xa bank_mask:0xf", "row_bcast:31 row_mask:0xc bank_mask:0xf"):
        for i in range(4):
            A(f"v_add_f32_dpp v{T+i}, v{T+i}, v{T+i} {m}")
    for r in range(2):
        A(f"""
v_mul_f32 v{T+2*r}, 0x3b000000, v{T+2*r}
v_mul_f32 v{T+2*r+1}, 0x3b000000, v{T+2*r+1}
v_fma_f32 v{T+2*r+1}, -v{T+2*r}, v{T+2*r}, v{T+2*r+1}
v_max_f32 v{T+2*r+1}, 0, v{T+2*r+1}
v_add_f32 v{T+2*r+1}, 0x3727c5ac, v{T+2*r+1}
v_rsq_f32 v{T+2*r+1}, v{T+2*r+1}
""")
    A(f"""
s_lshl_b32 s{sT}, s{sB}, 6
s_lshl_b32 s{sT+1}, s{sW}, 4
s_add_u32 s{sT}, s{sT}, s{sT+1}
s_add_u32 s{sT}, s{sT}, {ST1}
v_mov_b32 v{T+5}, 0
s_mov_b32 exec_lo, 0
s_mov_b32 exec_hi, 0x80000000
buffer_store_dwordx4 v[{T}:{T+3}], v{T+5}, {srd(SWS)}, s{sT} offen {flags}
s_mov_b64 exec, -1
""")

FC = 0; FCS = 4160; SIG = 33280; SIGS = 4608; YB = 0
AF = 128; ACC1 = 96; BB1 = 80

def p1_filter_loads(A, F):
    A(f"""
s_lshl_b32 s{sT+10}, s{sG}, 18
s_lshl_b32 s{sT+11}, s{sR}, 13
s_add_u32 s{sT+10}, s{sT+10}, s{sT+11}
s_add_u32 s{sT+11}, s{sT+10}, 4096
v_lshlrev_b32 v{F+12}, 4, v0
v_subrev_u32 v{F+13}, 8, v{F+12}
v_max_i32 v{F+13}, 0, v{F+13}
buffer_load_dwordx4 v[{F+2}:{F+5}], v{F+12}, {srd(SKF)}, s{sT+10} offen
buffer_load_dwordx2 v[{F}:{F+1}], v{F+13}, {srd(SKF)}, s{sT+10} offen
buffer_load_dwordx4 v[{F+8}:{F+11}], v{F+12}, {srd(SKF)}, s{sT+11} offen
buffer_load_dwordx2 v[{F+6}:{F+7}], v{F+13}, {srd(SKF)}, s{sT+11} offen
""")

def p1_build_copies(A, F, T, after):
    A(f"s_waitcnt vmcnt({after})")
    A(f"""
v_cmp_eq_u32 vcc, 0, v0
v_sub_u32 v{T+16}, 255, v0
v_lshlrev_b32 v{T+16}, 4, v{T+16}
s_mov_b32 s{sT}, 0x07060100
""")
    for c in range(2):
        for i in range(2):
            A(f"v_cndmask_b32 v{F+6*c+i}, v{F+6*c+i}, 0, vcc")
    for c in range(2):
        D = lambda x: F + 6*c + 2 + x
        for rho in range(4):
            for i in range(4):
                d = T + 4*rho + i
                if rho % 2 == 0:
                    x = 3 - i - rho//2
                    A(f"v_alignbit_b32 v{d}, v{D(x)}, v{D(x)}, 16")
                else:
                    x = 3 - i - rho//2
                    A(f"v_perm_b32 v{d}, v{D(x-1)}, v{D(x)}, s{sT}")
        for rho in range(4):
            A(f"ds_write_b128 v{T+16}, v[{T+4*rho}:{T+4*rho+3}] offset:{FC + (4*c+rho)*FCS}")
        if c == 0: A("s_nop 1")
    A(f"""
v_mov_b32 v{T}, 0
v_mov_b32 v{T+1}, 0
v_mov_b32 v{T+2}, 0
v_mov_b32 v{T+3}, 0
v_lshrrev_b32 v{T+17}, 1, v0
v_mul_u32_u24 v{T+17}, {FCS}, v{T+17}
v_and_b32 v{T+18}, 1, v0
v_lshl_add_u32 v{T+17}, v{T+18}, 4, v{T+17}
v_add_u32 v{T+17}, {FC + 4096}, v{T+17}
v_subrev_u32 v{T+18}, 16, v0
v_lshrrev_b32 v{T+19}, 5, v{T+18}
v_mul_u32_u24 v{T+19}, {SIGS}, v{T+19}
v_and_b32 v{T+18}, 31, v{T+18}
v_lshl_add_u32 v{T+18}, v{T+18}, 4, v{T+19}
v_add_u32 v{T+18}, {SIG}, v{T+18}
v_cmp_gt_u32 vcc, 16, v0
s_nop 1
v_cndmask_b32 v{T+17}, v{T+18}, v{T+17}, vcc
v_cmp_gt_u32 vcc, 80, v0
s_and_saveexec_b64 s[{sT+2}:{sT+3}], vcc
ds_write_b128 v{T+17}, v[{T}:{T+3}]
s_mov_b64 exec, s[{sT+2}:{sT+3}]
""")

def p1_load_afrags(A, T):
    A(f"""
v_and_b32 v{T}, 3, v0
v_sub_u32 v{T}, 3, v{T}
v_mul_u32_u24 v{T}, {FCS}, v{T}
v_and_b32 v{T+1}, 12, v0
v_lshlrev_b32 v{T+1}, 1, v{T+1}
v_sub_u32 v{T}, v{T}, v{T+1}
v_and_b32 v{T+1}, 48, v0
v_add_u32 v{T}, v{T}, v{T+1}
s_lshr_b32 s{sT}, s{sW}, 1
s_mul_i32 s{sT}, s{sT}, {4*FCS}
s_and_b32 s{sT+1}, s{sW}, 1
s_lshl_b32 s{sT+1}, s{sT+1}, 6
s_sub_u32 s{sT}, s{sT}, s{sT+1}
s_add_u32 s{sT}, s{sT}, {FC + 2*2028 - 128*31}
v_add_u32 v{T}, s{sT}, v{T}
""")
    for ai in range(32):
        A(f"ds_read_b64 v[{AF+4*ai}:{AF+4*ai+1}], v{T} offset:{128*(31-ai)}")
        A(f"ds_read_b64 v[{AF+4*ai+2}:{AF+4*ai+3}], v{T} offset:{128*(31-ai)+8}")

def p1_main(A, vBA, side):
    main = []
    NB = 4
    def rd(i): return f"ds_read_b128 v[{BB1+4*(i%NB)}:{BB1+4*(i%NB)+3}], v{vBA} offset:{128*i}"
    for i in range(NB-1): main.append((rd(i), 0))
    started = set()
    for i in range(32):
        if i + NB - 1 < 32: main.append((rd(i+NB-1), 0))
        main.append((f"s_waitcnt lgkmcnt({min(NB-1, 31-i)})", 0))
        jlo = max(0, -(-(i-3)//4))
        for j in range(7, jlo-1, -1):
            ai = 4*j + 3 - i
            c = f"v[{ACC1+4*j}:{ACC1+4*j+3}]" if j in started else "0"
            started.add(j)
            main.append((f"v_mfma_f32_16x16x32_bf16 v[{ACC1+4*j}:{ACC1+4*j+3}], v[{AF+4*ai}:{AF+4*ai+3}], v[{BB1+4*(i%NB)}:{BB1+4*(i%NB)+3}], {c}", 2))
    for l in interleave(main, side): A(l)

LOG2E = 1.4426950408889634

def gen_multi():
    A = Asm()
    hdr = ""
    A('.amdgcn_target "amdgcn-amd-amdhsa--gfx950"')
    prologue(A, "k0_kernel", "L_end0")
    R = p0(A)
    p0_compute(A, R, 0)
    p0_stats(A, R, 4)
    A("s_waitcnt vmcnt(0)\nL_end0:\ns_endpgm")
    A(descriptor("k0_kernel"))
    hdr += "; @launch kernel=k0_kernel grid=(256,1,1) block=(256,1,1) lds=0\n"
    prologue(A, "k1_kernel", "L_end1")
    k1(A)
    A("s_waitcnt vmcnt(0)\nL_end1:\ns_endpgm")
    A(descriptor("k1_kernel"))
    hdr += "; @launch kernel=k1_kernel grid=(256,1,1) block=(256,1,1) lds=65536\n"
    import gen23
    for nm, fn in (("k2", gen23.k2), ("k3", gen23.k3)):
        prologue(A, f"{nm}_kernel", f"L_end_{nm}")
        fn(A)
        A(f"s_waitcnt vmcnt(0)\nL_end_{nm}:\ns_endpgm")
        A(descriptor(f"{nm}_kernel"))
        hdr += f"; @launch kernel={nm}_kernel grid=(256,1,1) block=(256,1,1) lds=163840\n"
    return hdr + A.text(), ["k0_kernel", "k1_kernel", "k2_kernel", "k3_kernel"]

def p1_sig_loads(A, KVr, Xr, STr, fl=""):
    A(f"""
s_lshl_b32 s{sT}, s{sG}, 19
s_lshl_b32 s{sT+1}, s{sR}, 14
s_add_u32 s{sT}, s{sT}, s{sT+1}
s_add_u32 s{sT}, s{sT}, {KX}
s_add_u32 s{sT+1}, s{sT}, 4096
s_add_u32 s{sT+2}, s{sT}, 8192
s_add_u32 s{sT+3}, s{sT}, 12288
v_lshlrev_b32 v1, 4, v0
buffer_load_dwordx4 v[{KVr}:{KVr+3}], v1, {srd(SWS)}, s{sT} offen {fl}
buffer_load_dwordx4 v[{KVr+4}:{KVr+7}], v1, {srd(SWS)}, s{sT+1} offen {fl}
buffer_load_dwordx4 v[{Xr}:{Xr+3}], v1, {srd(SWS)}, s{sT+2} offen {fl}
buffer_load_dwordx4 v[{Xr+4}:{Xr+7}], v1, {srd(SWS)}, s{sT+3} offen {fl}
""")

def p1_stat_loads(A, STr, vt, fl=""):
    A(f"v_lshlrev_b32 v{vt}, 6, v0\ns_mov_b32 s{sT+4}, {ST1}")
    for i in range(4):
        A(f"buffer_load_dwordx4 v[{STr+4*i}:{STr+4*i+3}], v{vt}, {srd(SWS)}, s{sT+4} offen offset:{16*i} {fl}")

def p1_side(KVr, Xr, STr, Q, BS, T, sD0):
    side = []
    for c in range(2):
        for j in range(8):
            x, kv = T + 2*((c*8+j) % 4), T + 2*((c*8+j) % 4) + 1
            sx, sk = Xr + 4*c + j//2, KVr + 4*c + j//2
            if j % 2 == 0:
                side += [f"v_lshlrev_b32 v{x}, 16, v{sx}", f"v_lshlrev_b32 v{kv}, 16, v{sk}"]
            else:
                side += [f"v_and_b32 v{x}, s{sMASK}, v{sx}", f"v_and_b32 v{kv}, s{sMASK}, v{sk}"]
            q, b = Q + 8*c + j, BS + 8*c + j
            side += [f"v_sub_f32 v{q}, v{x}, v{STr+2*j}", f"v_mul_f32 v{kv}, s{sD0+c}, v{kv}", f"v_mul_f32 v{q}, v{q}, v{STr+2*j+1}",
                     f"v_fma_f32 v{b}, v{q}, v{kv}, v{x}"]
    return side

def p1_epilogue(A, Q, BS, T, stfl=""):
    Y = T + 8
    A(f"""
v_and_b32 v{T}, 15, v0
v_lshrrev_b32 v{T+1}, 1, v{T}
v_and_b32 v{T+1}, 3, v{T+1}
v_bfe_u32 v{T+2}, v0, 4, 2
v_xor_b32 v{T+1}, v{T+1}, v{T+2}
v_lshlrev_b32 v{T+1}, 4, v{T+1}
v_lshl_add_u32 v{T}, v{T}, 6, v{T+1}
s_lshl_b32 s{sT}, s{sW}, 13
v_add_u32 v{T}, s{sT}, v{T}
v_bfe_u32 v{T+1}, v0, 1, 4
v_bfe_u32 v{T+2}, v0, 2, 2
v_and_b32 v{T+3}, 1, v0
v_lshlrev_b32 v{T+3}, 1, v{T+3}
v_xor_b32 v{T+2}, v{T+2}, v{T+3}
v_lshlrev_b32 v{T+2}, 4, v{T+2}
v_lshl_add_u32 v{T+1}, v{T+1}, 6, v{T+2}
v_lshrrev_b32 v{T+2}, 5, v0
v_lshl_add_u32 v{T+1}, v{T+2}, 10, v{T+1}
v_xor_b32 v{T+2}, 16, v{T+1}
""")
    A(f"""
s_lshl_b32 s{sT+1}, s{sG}, 6          ; ch0 = 64g+2r
s_lshl_b32 s{sT+2}, s{sR}, 1
s_add_u32 s{sT+1}, s{sT+1}, s{sT+2}
s_lshr_b32 s{sT+2}, s{sT+1}, 2
s_and_b32 s{sT+2}, s{sT+2}, 3
s_lshl_b32 s{sT+2}, s{sT+2}, 1         ; swz<<1
s_and_b32 s{sT+3}, s{sT+1}, 0x1f0
s_lshr_b32 s{sT+4}, s{sT+1}, 1
s_and_b32 s{sT+4}, s{sT+4}, 7
s_add_u32 s{sT+3}, s{sT+3}, s{sT+4}    ; l
s_lshl_b32 s{sT+3}, s{sT+3}, 7
s_add_u32 s{sT+3}, s{sT+3}, {HT}
v_and_b32 v{T+3}, 7, v0
v_xor_b32 v{T+3}, s{sT+2}, v{T+3}
v_lshlrev_b32 v{T+3}, 4, v{T+3}
v_lshrrev_b32 v{T+4}, 3, v0
v_lshl_add_u32 v{T+3}, v{T+4}, 16, v{T+3}
""")
    return Y

def p1_epilogue2(A, Q, BS, T, stfl=""):
    Y = T + 8
    for j in range(8):
        A(f"ds_write_b128 v{T}, v[{ACC1+4*j}:{ACC1+4*j+3}] offset:{YB + 1024*j}")
    A("s_waitcnt lgkmcnt(0)\ns_barrier")
    for c in range(2):
        for pi in range(2):
            for e in range(2):
                d = Y + 16*c + 8*pi + 4*e
                A(f"ds_read_b128 v[{d}:{d+3}], v{T+1+e} offset:{YB + (2*c+pi)*8192}")
    for c in range(2):
        A(f"s_waitcnt lgkmcnt({4*(1-c)})")
        for j in range(0, 8, 2):
            y = Y + 16*c + j
            A(f"v_pk_add_f32 v[{y}:{y+1}], v[{y}:{y+1}], v[{y+8}:{y+9}]")
        for j in range(0, 8, 2):
            y = Y + 16*c + j
            A(f"v_pk_fma_f32 v[{y}:{y+1}], v[{y}:{y+1}], v[{Q+8*c+j}:{Q+8*c+j+1}], v[{BS+8*c+j}:{BS+8*c+j+1}]")
        for j in range(0, 8, 2):
            y = Y + 16*c + j
            A(f"v_cvt_pk_bf16_f32 v{Y+16*c+8+j//2}, v{y}, v{y+1}")
        A(f"buffer_store_dwordx4 v[{Y+16*c+8}:{Y+16*c+11}], v{T+3}, {srd(SWS)}, s{sT+3} offen offset:{1024*c} {stfl}")

def p1_baddr(A, v, t):
    A(f"""
v_and_b32 v{v}, 15, v0
v_lshlrev_b32 v{v}, 5, v{v}
v_and_b32 v{t}, 48, v0
v_add_u32 v{v}, v{v}, v{t}
s_lshr_b32 s{sT}, s{sW}, 1
s_mul_i32 s{sT}, s{sT}, {SIGS}
s_and_b32 s{sT+1}, s{sW}, 1
s_lshl_b32 s{sT+1}, s{sT+1}, 6
s_sub_u32 s{sT}, s{sT}, s{sT+1}
s_add_u32 s{sT}, s{sT}, {SIG + 32 + 64}
v_add_u32 v{v}, s{sT}, v{v}
""")

def p1_dload(A):
    A(f"""
s_lshl_b32 s{sT+12}, s{sG}, 7
s_lshl_b32 s{sT+13}, s{sR}, 2
s_add_u32 s{sT+12}, s{sT+12}, s{sT+13}
s_load_dword s{sT+14}, s[{sD}:{sD+1}], s{sT+12}
""")
def p1_dconv(A):
    A(f"""
s_waitcnt lgkmcnt(0)
s_and_b32 s{sT+15}, s{sT+14}, s{sMASK}
s_lshl_b32 s{sT+14}, s{sT+14}, 16
""")

def k1(A):
    F = 2; KVr = 16; Xr = 24; STr = 32; T = 48
    p1_filter_loads(A, F)
    p1_sig_loads(A, KVr, Xr, STr)
    p1_stat_loads(A, STr, 1)
    p1_dload(A)
    p1_build_copies(A, F, T, 8)
    p1_dconv(A)
    A(f"s_waitcnt vmcnt(6)\nv_lshlrev_b32 v1, 4, v0")
    for c in range(2):
        A(f"ds_write_b128 v1, v[{KVr+4*c}:{KVr+4*c+3}] offset:{SIG + c*SIGS + 512}")
    A("s_waitcnt lgkmcnt(0)\ns_barrier")
    p1_load_afrags(A, T)
    p1_baddr(A, 2, 3)
    Q, BS = 48, 64
    A("s_waitcnt vmcnt(0) lgkmcnt(0)\ns_barrier")
    side = p1_side(KVr, Xr, STr, Q, BS, 4, sT+14)
    p1_main(A, 2, side)
    p1_epilogue(A, Q, BS, 4)
    p1_epilogue2(A, Q, BS, 4)

if __name__ == "__main__":
    out = sys.argv[1] if len(sys.argv) > 1 else "multi.s"
    txt, kernels = gen_multi()
    open(out, "w").write(txt)
    for k in kernels:
        errs, n = check(txt, k)
        print(k, "paths", n, "errors", len(errs))
        for e in errs[:20]: print("  ", e)
```
